```python
import torch

def _softmax(x, axis=-1):
    return torch.softmax(x, dim=axis)
def _gelu(x):
    return torch.nn.functional.gelu(x, approximate="tanh")
def _silu(x):
    return torch.nn.functional.silu(x)
def _sigmoid(x):
    return torch.sigmoid(x)
def _layernorm(x, axis=-1, eps=1e-5):
    m = x.mean(dim=axis, keepdim=True)
    v = x.var(dim=axis, keepdim=True, unbiased=False)
    return (x - m) / torch.sqrt(v + eps)
def _scatter_add(tgt, idx, src, axis=0):
    return tgt.clone().index_add_(axis, idx, src)
def _segment_sum(src, seg, n):
    out = torch.zeros((n,) + src.shape[1:], dtype=src.dtype)
    return out.index_add_(0, seg, src)
def _pad(x, pw):
    flat = tuple(v for pair in reversed(pw) for v in pair)
    return torch.nn.functional.pad(x, flat)

kernel_name = 'standalone__paged_block_table_kv_pagedattention__sampling'

def setup_inputs():

    _w = (lambda a: (lambda t: t.to(torch.bfloat16) if t.is_floating_point() else t)(torch.as_tensor(a)))
    B, Hq, Hkv, Sq, Skv, D = 16, 32, 4, 8, 4096, 128
    bs = 16
    nbps = max(1, Skv // bs)
    num_phys = B * nbps + 4
    bt = torch.randperm(num_phys)[: B * nbps].reshape(B, nbps).to(torch.int64)
    cl = (nbps * bs - (torch.arange(1, B + 1, dtype=torch.int64) * 2654435761) % max(1, nbps * bs // 2)).to(torch.int64)
    return {
        "q": _w((lambda *s: torch.randn(*s, dtype=torch.bfloat16) * 0.8)(B, Hq, Sq, D)),
        "k_cache": _w((lambda *s: torch.randn(*s, dtype=torch.bfloat16) * 0.8)(num_phys, bs, Hkv, D)),
        "v_cache": _w((lambda *s: torch.randn(*s, dtype=torch.bfloat16) * 0.05)(num_phys, bs, Hkv, D)),
        "block_table": _w(bt),
        "context_lens": _w(cl),
    }

def reference(q, k_cache, v_cache, block_table, context_lens):
    B, Hq, Sq, D = q.shape
    bs = k_cache.shape[1]
    Hkv = k_cache.shape[2]
    nbps = block_table.shape[1]
    Skv = nbps * bs
    bt = block_table.reshape(-1)
    k = (lambda x, *d: x.permute(*d))(k_cache[bt].reshape(B, Skv, Hkv, D), 0, 2, 1, 3)
    v = (lambda x, *d: x.permute(*d))(v_cache[bt].reshape(B, Skv, Hkv, D), 0, 2, 1, 3)
    g = Hq // Hkv
    qg = q.reshape(B, Hkv, g, Sq, D)
    scores = torch.einsum("bhgqd,bhkd->bhgqk", qg, k) * (D ** -0.5)
    pos = torch.arange(Skv)
    msk = pos[None, :] < context_lens[:, None]
    scores = torch.where(msk[:, None, None, None, :], scores, -1e9)
    p = _softmax(scores, axis=-1)
    out = torch.einsum("bhgqk,bhkd->bhgqd", p, v)
    return out.reshape(B, Hq, Sq, D)
```

```python
import re

_MOD_RE = re.compile(
    r"\s+(op_sel(?:_hi)?:\[[^\]]*\]|neg_(?:lo|hi):\[[^\]]*\]|offset[01]?:\S+|offen|idxen|lds|sc0|sc1|nt|off|clamp)(?=\s|$)")

TRANS = ("v_exp_", "v_log_", "v_rcp_", "v_rsq_", "v_sqrt_", "v_sin_", "v_cos_")
NODST = ("ds_write", "buffer_store", "global_store", "s_cmp", "s_waitcnt", "s_barrier", "s_branch",
         "s_cbranch", "s_nop", "s_endpgm", "s_setprio", "s_sleep", "s_bitcmp")


def regs_of(tok):
    tok = tok.strip()
    tok = tok.lstrip("-")
    m = re.fullmatch(r"(?:abs\()?([vsa])(\d+)\)?", tok)
    if m:
        return {(m.group(1), int(m.group(2)))}
    m = re.fullmatch(r"([vsa])\[(\d+):(\d+)\]", tok)
    if m:
        return {(m.group(1), i) for i in range(int(m.group(2)), int(m.group(3)) + 1)}
    if tok in ("vcc",):
        return {("vcc", 0)}
    if tok == "m0":
        return {("m0", 0)}
    if tok == "exec":
        return {("exec", 0)}
    return set()


class Ins:
    __slots__ = ("text", "op", "kind", "w", "r", "srcc", "states", "passes", "dma")


def parse(text):
    ins = Ins()
    ins.text = text
    t = text.strip()
    op = t.split()[0]
    ins.op = op
    rest = t[len(op):]
    dma = bool(re.search(r"\slds(\s|$)", rest)) and op.startswith("buffer_load")
    rest = _MOD_RE.sub("", " " + rest.strip())
    ops = [x.strip() for x in rest.split(",") if x.strip()]
    ins.dma = dma
    ins.states = 1
    ins.passes = 0
    ins.srcc = set()
    if op.startswith("v_mfma"):
        ins.kind = "mfma"
        ins.passes = 8 if "32x32" in op else 4
    elif op.startswith(TRANS):
        ins.kind = "trans"
    elif op.startswith("v_"):
        ins.kind = "valu"
    elif op.startswith(("buffer_", "global_")):
        ins.kind = "vmem"
    elif op.startswith("ds_"):
        ins.kind = "ds"
    elif op.startswith("s_load"):
        ins.kind = "smem"
    elif op.startswith("s_"):
        ins.kind = "salu"
    else:
        ins.kind = "other"
    if op == "s_nop":
        ins.states = int(ops[0], 0) + 1
    w, r = set(), set()
    if op.startswith(NODST) or dma:
        for o in ops:
            r |= regs_of(o)
    else:
        if ops:
            w |= regs_of(ops[0])
        for o in ops[1:]:
            r |= regs_of(o)
        if "permlane" in op:
            w |= regs_of(ops[1])
            r |= regs_of(ops[0])
        if op.startswith(("v_fmac", "v_pk_fmac")):
            r |= regs_of(ops[0])
        if "saveexec" in op:
            w.add(("exec", 0))
    if dma:
        r.add(("m0", 0))
    if ins.kind == "mfma":
        ins.srcc = regs_of(ops[3])
    ins.w, ins.r = w, r
    return ins


def vset(s):
    return {x for x in s if x[0] in ("v", "a")}


def sset(s):
    return {x for x in s if x[0] in ("s", "vcc")}


def need(p, c):
    n = 0
    pv_w = vset(p.w)
    ps_w = sset(p.w)
    if p.kind in ("valu", "trans"):
        if c.kind == "mfma" and pv_w & vset(c.r):
            n = max(n, 2)
        if "permlane" in c.op and pv_w & vset(c.r):
            n = max(n, 2)
        if c.op.startswith(("v_readlane", "v_readfirstlane")) and pv_w & vset(c.r):
            n = max(n, 1)
        if p.kind == "trans" and c.kind in ("valu",) and pv_w & vset(c.r):
            n = max(n, 1)
        if ps_w:
            if c.kind in ("valu", "trans") and ps_w & sset(c.r):
                n = max(n, 4 if c.op.startswith(("v_readlane", "v_writelane")) else 2)
            if c.kind == "vmem" and ps_w & sset(c.r):
                n = max(n, 5)
            if c.kind in ("salu", "smem") and ps_w & sset(c.r):
                n = max(n, 2)
    if p.kind == "mfma":
        d = pv_w
        if c.kind == "mfma":
            if c.srcc == d and not (d & (vset(c.r) - c.srcc)):
                pass
            else:
                if d & c.srcc:
                    n = max(n, {4: 6, 8: 10}[p.passes])
                if d & (vset(c.r) - c.srcc):
                    n = max(n, {4: 8, 8: 12}[p.passes])
        elif c.kind in ("valu", "trans", "vmem", "ds"):
            if d & (vset(c.r) | vset(c.w)):
                n = max(n, {4: 8, 8: 12}[p.passes])
        if c.kind in ("valu", "trans") and p.srcc & vset(c.w):
            n = max(n, {4: 3, 8: 7}[p.passes])
    if p.kind == "salu" and ("m0", 0) in p.w and c.dma:
        n = max(n, 1)
    if p.kind == "vmem" and "store" in p.op and ("dwordx3" in p.op or "dwordx4" in p.op):
        if c.kind in ("valu", "trans") and vset(p.r) & vset(c.w):
            n = max(n, 2)
    return n


class Emitter:
    def __init__(self):
        self.lines = []
        self.hist = []
        self.nops = 0

    def raw(self, text):
        self.lines.append(text)

    def label(self, name):
        self.lines.append(name + ":")

    def comment(self, text):
        self.lines.append("    ; " + text)

    def __call__(self, text):
        c = parse(text)
        dist = 0
        req = 0
        for p in reversed(self.hist[-40:]):
            k = need(p, c)
            if k > dist:
                req = max(req, k - dist)
            dist += p.states
            if dist >= 20:
                break
        if req > 0:
            self.nops += 1
            nop = parse("s_nop %d" % (req - 1))
            self.hist.append(nop)
            self.lines.append("    s_nop %d" % (req - 1))
        self.hist.append(c)
        self.lines.append("    " + text)

    def text(self):
        return "\n".join(self.lines) + "\n"
```

```python
import math
import struct
import sys

sys.path.insert(0, "gen")
from emit import Emitter

T = 512
NS = 4
NCH = 4096 // T
KV_BYTES = 4100 * 16384
WS_BYTES = 268697600
MLBASE = 64 * NCH * 32768
NEG = 0xF149F2CA
NINF = 0xFF800000
CSCALE = (128 ** -0.5) * math.log2(math.e)


def f2u(x):
    return struct.unpack("<I", struct.pack("<f", x))[0]


MAIN = "standalone__paged_block_table_kv_pagedattention__sampling_kernel"
COMB = "pa_combine_kernel"

e = Emitter()
I = e

hdr = open("standalone__paged_block_table_kv_pagedattention__sampling.s.ref").read()
hdr_lines = []
for ln in hdr.splitlines():
    if ln.startswith("; Override") or ln.startswith("; grid=") or "@launch" in ln:
        continue
    if not ln.startswith(";"):
        break
    hdr_lines.append(ln)
e.raw("\n".join(hdr_lines))
e.raw("; @launch kernel=%s grid=(%d,1,1) block=(256,1,1) lds=%d" % (MAIN, 64 * NCH, NS * 16384))
e.raw("; @launch kernel=%s grid=(512,1,1) block=(256,1,1) lds=0" % COMB)
e.raw('.amdgcn_target "amdgcn-amd-amdhsa--gfx950"')
e.raw(".text")

e.raw(".globl %s" % MAIN)
e.raw(".p2align 8")
e.raw(".type %s,@function" % MAIN)
e.label(MAIN)

sK, sV, sQ, sWS, sBT = 20, 24, 28, 32, 36
s_chunk, s_b, s_hkv, s_w, s_cl, s_start, s_nt, s_t = 40, 41, 42, 43, 44, 45, 46, 47
s_btidx, s_soff, s_headoff, s_oob, s_ldsw, s_rem, s_c, s_tmp, s_tn, s_end = 48, 49, 50, 51, 52, 53, 54, 55, 56, 57
vQ, vO, vS, vKf, vVf, vP = 8, 24, 56, 64, 96, 128
vKa, vVa = 132, 136
vOK0, vOK1, vOV0, vOV1 = 144, 145, 146, 147
vBT = 148
vM, vL = 150, 151
vAl = 152
vT = 154
vG4 = 166
vNEG = 167


def v(n, cnt=1):
    return "v%d" % n if cnt == 1 else "v[%d:%d]" % (n, n + cnt - 1)


def s(n, cnt=1):
    return "s%d" % n if cnt == 1 else "s[%d:%d]" % (n, n + cnt - 1)


I("s_load_dwordx16 s[4:19], s[0:1], 0")
I("s_lshr_b32 s%d, s2, 6" % s_chunk)
I("s_bfe_u32 s%d, s2, 0x40002" % s_b)
I("s_and_b32 s%d, s2, 3" % s_hkv)
I("v_lshrrev_b32 v2, 6, v0")
I("v_and_b32 v1, 63, v0")
I("v_readfirstlane_b32 s%d, v2" % s_w)
I("s_lshl_b32 s%d, s%d, %d" % (s_start, s_chunk, int(math.log2(T))))
I("s_lshl_b32 s3, s%d, 2" % s_b)
I("s_waitcnt lgkmcnt(0)")
I("s_load_dword s%d, s[12:13], s3" % s_cl)
for base, srd, nbytes in ((6, sK, KV_BYTES), (8, sV, KV_BYTES), (4, sQ, 16 * 32 * 8 * 128 * 2),
                          (18, sWS, WS_BYTES), (10, sBT, 16 * 256 * 4)):
    I("s_mov_b32 s%d, s%d" % (srd, base))
    I("s_mov_b32 s%d, s%d" % (srd + 1, base + 1))
    I("s_mov_b32 s%d, 0x%x" % (srd + 2, nbytes))
    I("s_mov_b32 s%d, 0x20000" % (srd + 3))
I("s_lshl_b32 s3, s%d, 8" % s_b)
I("s_lshl_b32 s%d, s%d, %d" % (s_tmp, s_chunk, int(math.log2(T // 16))))
I("s_add_u32 s3, s3, s%d" % s_tmp)
I("s_lshl_b32 s3, s3, 2")
I("v_lshlrev_b32 v2, 2, v1")
I("buffer_load_dword v%d, v2, %s, s3 offen" % (vBT, s(sBT, 4)))
I("v_and_b32 v3, 15, v1")
I("v_lshrrev_b32 v4, 4, v1")
I("v_lshlrev_b32 v2, 8, v3")
I("v_lshl_add_u32 v2, v4, 4, v2")
I("s_lshl_b32 s3, s%d, 16" % s_b)
I("s_lshl_b32 s%d, s%d, 14" % (s_tmp, s_hkv))
I("s_add_u32 s3, s3, s%d" % s_tmp)
I("s_lshl_b32 s%d, s%d, 12" % (s_tmp, s_w))
I("s_add_u32 s3, s3, s%d" % s_tmp)
for j in range(4):
    I("buffer_load_dwordx4 %s, v2, %s, s3 offen offset:%d" % (v(vQ + 4 * j, 4), s(sQ, 4), 64 * j))

t0, t1, t2, t3, t4 = vT, vT + 1, vT + 2, vT + 3, vT + 4
I("v_xor_b32 v%d, v4, v3" % t0)
for j in range(4):
    I("v_xor_b32 v%d, %d, v%d" % (t1, 4 * j, t0))
    I("v_lshlrev_b32 v%d, 4, v%d" % (t1, t1))
    I("v_lshl_add_u32 v%d, v3, 8, v%d" % (vKa + j, t1))
I("v_lshrrev_b32 v%d, 2, v3" % t0)
I("v_lshl_add_u32 v%d, v4, 2, v%d" % (t1, t0))
I("v_and_b32 v%d, 1, v4" % t2)
I("v_lshl_add_u32 v%d, v%d, 2, v%d" % (t2, t2, t0))
I("v_lshlrev_b32 v%d, 1, v%d" % (t2, t2))
I("v_bfe_u32 v%d, v3, 1, 1" % t3)
I("v_xor_b32 v%d, v%d, v%d" % (t3, t3, t2))
I("v_lshlrev_b32 v%d, 4, v%d" % (t3, t3))
I("v_lshl_add_u32 v%d, v%d, 8, v%d" % (t3, t1, t3))
I("v_and_b32 v%d, 1, v3" % t4)
I("v_lshl_add_u32 v%d, v%d, 3, v%d" % (t3, t4, t3))
for db in range(8):
    I("v_xor_b32 v%d, %d, v%d" % (vVa + db, db << 5, t3))
I("s_and_b32 s3, s%d, 1" % s_w)
I("s_lshl_b32 s3, s3, 1")
I("v_xor_b32 v%d, v3, v4" % t0)
I("v_lshlrev_b32 v%d, 1, v4" % t1)
I("v_xor_b32 v%d, v3, v%d" % (t1, t1))
for ee in range(2):
    I("s_add_u32 s%d, s3, %d" % (s_tmp, ee))
    I("s_lshl_b32 s%d, s%d, 2" % (s_oob, s_tmp))
    I("v_xor_b32 v%d, s%d, v%d" % (t2, s_oob, t0))
    I("v_lshlrev_b32 v%d, 4, v%d" % (t2, t2))
    I("v_lshl_add_u32 v%d, v4, 10, v%d" % (t2, t2))
    I("s_lshl_b32 s%d, s%d, 12" % (s_oob, s_tmp))
    I("v_add_u32 v%d, s%d, v%d" % ((vOK0, vOK1)[ee], s_oob, t2))
    I("v_xor_b32 v%d, %d, v%d" % (t3, 8 * ee, t1))
    I("v_lshlrev_b32 v%d, 4, v%d" % (t3, t3))
    I("v_lshl_add_u32 v%d, v4, 10, v%d" % (t3, t3))
    I("v_add_u32 v%d, s%d, v%d" % ((vOV0, vOV1)[ee], s_oob, t3))
I("v_lshlrev_b32 v%d, 2, v4" % vG4)
I("s_lshl_b32 s%d, s%d, 11" % (s_ldsw, s_w))
I("s_lshl_b32 s%d, s%d, 8" % (s_headoff, s_hkv))
I("s_mov_b32 s%d, 0x%x" % (s_oob, KV_BYTES))
I("s_mov_b32 s%d, 0x%x" % (s_c, f2u(CSCALE)))
I("s_lshr_b32 s%d, s%d, 1" % (s_btidx, s_w))
for i in range(32):
    I("v_mov_b32 v%d, 0" % (vO + i))
I("v_mov_b32 v%d, 0x%x" % (vM, NINF))
I("v_mov_b32 v%d, 0" % vL)
I("v_mov_b32 v%d, 0x%x" % (vNEG, NEG))
I("s_waitcnt lgkmcnt(0)")
I("s_min_i32 s%d, s%d, 0x1000" % (s_tmp, s_cl))
I("s_cmp_le_i32 s%d, 0" % s_cl)
I("s_cselect_b32 s%d, 0x1000, s%d" % (s_tmp, s_tmp))
I("s_add_u32 s%d, s%d, %d" % (s_end, s_start, T))
I("s_min_i32 s%d, s%d, s%d" % (s_end, s_end, s_tmp))
I("s_cmp_ge_i32 s%d, s%d" % (s_start, s_end))
I("s_cbranch_scc1 L_main_done")
I("s_sub_u32 s%d, s%d, s%d" % (s_nt, s_end, s_start))
I("s_add_u32 s%d, s%d, 31" % (s_nt, s_nt))
I("s_lshr_b32 s%d, s%d, 5" % (s_nt, s_nt))
I("s_sub_i32 s%d, s%d, s%d" % (s_rem, s_cl, s_start))
I("s_mov_b32 s%d, 0" % s_t)
I("s_mov_b32 s%d, 0" % s_tn)


def dma_issue(st):
    I("v_readlane_b32 s%d, v%d, s%d" % (s_soff, vBT, s_btidx))
    I("s_add_u32 s%d, s%d, 2" % (s_btidx, s_btidx))
    I("s_lshl_b32 s%d, s%d, 14" % (s_soff, s_soff))
    I("s_add_u32 s%d, s%d, s%d" % (s_soff, s_soff, s_headoff))
    I("s_cmp_lt_u32 s%d, s%d" % (s_tn, s_nt))
    I("s_cselect_b32 s%d, s%d, s%d" % (s_soff, s_soff, s_oob))
    I("s_add_u32 s%d, s%d, 1" % (s_tn, s_tn))
    for vo, srd, off in ((vOK0, sK, 0), (vOK1, sK, 1024), (vOV0, sV, 8192), (vOV1, sV, 9216)):
        I("s_add_u32 m0, s%d, 0x%x" % (s_ldsw, st * 16384 + off))
        I("buffer_load_dwordx4 v%d, %s, s%d offen lds" % (vo, s(srd, 4), s_soff))


I("s_waitcnt vmcnt(4)")
for st in range(NS - 1):
    dma_issue(st)


def softmax(masked, tag):
    S = [vS + i for i in range(8)]
    a0, a1, a2, a3 = vT, vT + 1, vT + 2, vT + 3
    if masked:
        for i in range(8):
            kg, r = i // 4, i % 4
            I("v_mul_f32 v%d, s%d, v%d" % (S[i], s_c, S[i]))
            I("s_sub_i32 s3, s%d, %d" % (s_rem, 16 * kg + r))
            I("v_cmp_gt_i32 vcc, s3, v%d" % vG4)
            I("v_cndmask_b32 v%d, v%d, v%d, vcc" % (S[i], vNEG, S[i]))
    I("v_max3_f32 v%d, v%d, v%d, v%d" % (a0, S[0], S[1], S[2]))
    I("v_max3_f32 v%d, v%d, v%d, v%d" % (a1, S[3], S[4], S[5]))
    I("v_max3_f32 v%d, v%d, v%d, v%d" % (a0, a0, S[6], S[7]))
    I("v_max_f32 v%d, v%d, v%d" % (a0, a0, a1))
    I("v_mov_b32 v%d, v%d" % (a1, a0))
    I("v_permlane32_swap_b32 v%d, v%d" % (a1, a0))
    I("v_max_f32 v%d, v%d, v%d" % (a0, a0, a1))
    I("v_mov_b32 v%d, v%d" % (a1, a0))
    I("v_permlane16_swap_b32 v%d, v%d" % (a1, a0))
    I("v_max_f32 v%d, v%d, v%d" % (a0, a0, a1))
    if not masked:
        I("v_mul_f32 v%d, s%d, v%d" % (a0, s_c, a0))
    I("v_max_f32 v%d, v%d, v%d" % (a2, vM, a0))
    I("v_sub_f32 v%d, v%d, v%d" % (a3, vM, a2))
    I("v_exp_f32 v%d, v%d" % (vAl, a3))
    I("v_mov_b32 v%d, v%d" % (vM, a2))
    for i in range(8):
        if masked:
            I("v_sub_f32 v%d, v%d, v%d" % (S[i], S[i], a2))
        else:
            I("v_fma_f32 v%d, v%d, s%d, -v%d" % (S[i], S[i], s_c, a2))
    for i in range(8):
        I("v_exp_f32 v%d, v%d" % (S[i], S[i]))
    for i in range(4):
        I("v_cvt_pk_bf16_f32 v%d, v%d, v%d" % (vP + i, S[2 * i], S[2 * i + 1]))
    I("v_add_f32 v%d, v%d, v%d" % (a0, S[0], S[1]))
    I("v_add_f32 v%d, v%d, v%d" % (a1, S[2], S[3]))
    I("v_add_f32 v%d, v%d, v%d" % (a2, S[4], S[5]))
    I("v_add_f32 v%d, v%d, v%d" % (a3, S[6], S[7]))
    I("v_add_f32 v%d, v%d, v%d" % (a0, a0, a1))
    I("v_add_f32 v%d, v%d, v%d" % (a2, a2, a3))
    I("v_add_f32 v%d, v%d, v%d" % (a0, a0, a2))
    I("v_fma_f32 v%d, v%d, v%d, v%d" % (vL, vL, vAl, a0))
    for i in range(32):
        I("v_mul_f32 v%d, v%d, v%d" % (vO + i, vAl, vO + i))


def body(st):
    base = st * 16384
    I("s_waitcnt vmcnt(%d)" % (4 * (NS - 2)))
    I("s_barrier")
    dma_issue((st + NS - 1) % NS)
    for kg in range(2):
        for j in range(4):
            I("ds_read_b128 %s, v%d offset:%d" % (v(vKf + 16 * kg + 4 * j, 4), vKa + j, base + kg * 4096))
    for kg in range(2):
        for j in range(4):
            idx = kg * 4 + j
            I("s_waitcnt lgkmcnt(%d)" % (7 - idx))
            I("v_mfma_f32_16x16x32_bf16 %s, %s, %s, %s" % (
                v(vS + 4 * kg, 4), v(vKf + 4 * idx, 4), v(vQ + 4 * j, 4),
                "0" if j == 0 else v(vS + 4 * kg, 4)))
    for db in range(8):
        for hh in range(2):
            I("ds_read_b64_tr_b16 %s, v%d offset:%d" % (
                v(vVf + 4 * db + 2 * hh, 2), vVa + db, base + 8192 + hh * 4096))
    I("s_cmp_lt_i32 s%d, 32" % s_rem)
    I("s_cbranch_scc1 L_msk%d" % st)
    softmax(False, st)
    I("s_branch L_pv%d" % st)
    e.label("L_msk%d" % st)
    softmax(True, st)
    e.label("L_pv%d" % st)
    I("s_waitcnt lgkmcnt(0)")
    for db in range(8):
        I("v_mfma_f32_16x16x32_bf16 %s, %s, %s, %s" % (
            v(vO + 4 * db, 4), v(vVf + 4 * db, 4), v(vP, 4), v(vO + 4 * db, 4)))
    I("s_sub_i32 s%d, s%d, 32" % (s_rem, s_rem))
    I("s_add_u32 s%d, s%d, 1" % (s_t, s_t))
    I("s_cmp_ge_u32 s%d, s%d" % (s_t, s_nt))
    I("s_cbranch_scc1 L_epi")


e.label("L_loop")
for st in range(NS):
    body(st)
I("s_branch L_loop")

e.label("L_epi")
a0 = vT
I("v_mov_b32 v%d, v%d" % (a0, vL))
I("v_permlane32_swap_b32 v%d, v%d" % (a0, vL))
I("v_add_f32 v%d, v%d, v%d" % (vL, vL, a0))
I("v_mov_b32 v%d, v%d" % (a0, vL))
I("v_permlane16_swap_b32 v%d, v%d" % (a0, vL))
I("v_add_f32 v%d, v%d, v%d" % (vL, vL, a0))
I("v_lshl_add_u32 v2, s%d, 4, v3" % s_w)
I("v_lshlrev_b32 v5, 9, v2")
I("v_lshl_add_u32 v5, v4, 4, v5")
I("s_lshl_b32 s3, s2, 15")
I("s_nop 7")
for db in range(8):
    I("buffer_store_dwordx4 %s, v5, %s, s3 offen offset:%d" % (v(vO + 4 * db, 4), s(sWS, 4), 64 * db))
I("v_lshlrev_b32 v6, 3, v2")
I("s_lshl_b32 s3, s2, 9")
I("s_add_u32 s3, s3, 0x%x" % MLBASE)
I("v_cmp_gt_u32 vcc, 16, v1")
I("s_and_saveexec_b64 s[58:59], vcc")
I("buffer_store_dwordx2 %s, v6, %s, s3 offen" % (v(vM, 2), s(sWS, 4)))
e.label("L_main_done")
I("s_endpgm")

e.raw(".p2align 8")
e.raw(".globl %s" % COMB)
e.raw(".type %s,@function" % COMB)
e.label(COMB)
e.hist = []
cWS, cOUT = 20, 24
I("s_cmp_ge_u32 s2, 512")
I("s_cbranch_scc1 L_comb_done")
I("s_load_dwordx16 s[4:19], s[0:1], 0")
I("s_lshr_b32 s3, s2, 5")
I("s_lshl_b32 s3, s3, 2")
I("v_lshrrev_b32 v2, 6, v0")
I("v_and_b32 v1, 63, v0")
I("v_readfirstlane_b32 s43, v2")
I("s_waitcnt lgkmcnt(0)")
I("s_load_dword s44, s[12:13], s3")
for base, srd, nbytes in ((18, cWS, WS_BYTES), (14, cOUT, 16 * 32 * 8 * 128 * 2)):
    I("s_mov_b32 s%d, s%d" % (srd, base))
    I("s_mov_b32 s%d, s%d" % (srd + 1, base + 1))
    I("s_mov_b32 s%d, 0x%x" % (srd + 2, nbytes))
    I("s_mov_b32 s%d, 0x20000" % (srd + 3))
I("v_and_b32 v3, 31, v1")
I("v_lshrrev_b32 v4, 5, v1")
I("v_lshl_add_u32 v4, s43, 1, v4")
I("v_lshlrev_b32 v5, 9, v4")
I("v_lshl_add_u32 v5, v3, 4, v5")
I("v_lshlrev_b32 v6, 3, v4")
I("v_lshlrev_b32 v7, 8, v4")
I("v_lshl_add_u32 v7, v3, 3, v7")
cO, cML = 16, 48
for sp in range(NCH):
    for i in range(4):
        I("v_mov_b32 v%d, 0" % (cO + 4 * sp + i))
    I("v_mov_b32 v%d, 0x%x" % (cML + 2 * sp, NINF))
    I("v_mov_b32 v%d, 0" % (cML + 2 * sp + 1))
I("s_lshr_b32 s45, s2, 3")
I("s_and_b32 s46, s2, 7")
I("s_lshl_b32 s47, s45, 15")
I("s_lshl_b32 s3, s46, 12")
I("s_add_u32 s47, s47, s3")
I("s_lshl_b32 s48, s45, 9")
I("s_lshl_b32 s3, s46, 6")
I("s_add_u32 s48, s48, s3")
I("s_add_u32 s48, s48, 0x%x" % MLBASE)
I("s_waitcnt lgkmcnt(0)")
I("s_min_i32 s3, s44, 0x1000")
I("s_cmp_le_i32 s44, 0")
I("s_cselect_b32 s3, 0x1000, s3")
I("s_add_u32 s3, s3, %d" % (T - 1))
I("s_lshr_b32 s49, s3, %d" % int(math.log2(T)))
for sp in range(NCH):
    if sp > 0:
        I("s_cmp_le_u32 s49, %d" % sp)
        I("s_cbranch_scc1 L_comb_loaded")
    I("buffer_load_dwordx4 %s, v5, %s, s47 offen" % (v(cO + 4 * sp, 4), s(cWS, 4)))
    I("buffer_load_dwordx2 %s, v6, %s, s48 offen" % (v(cML + 2 * sp, 2), s(cWS, 4)))
    I("s_add_u32 s47, s47, 0x%x" % (64 * 32768))
    I("s_add_u32 s48, s48, 0x%x" % (64 * 512))
e.label("L_comb_loaded")
I("s_waitcnt vmcnt(0)")
I("v_max_f32 v8, v%d, v%d" % (cML, cML + 2))
for sp in range(2, NCH):
    I("v_max_f32 v8, v8, v%d" % (cML + 2 * sp))
for sp in range(NCH):
    I("v_sub_f32 v%d, v%d, v8" % (cML + 2 * sp, cML + 2 * sp))
for sp in range(NCH):
    I("v_exp_f32 v%d, v%d" % (cML + 2 * sp, cML + 2 * sp))
I("v_mul_f32 v9, v%d, v%d" % (cML, cML + 1))
for sp in range(1, NCH):
    I("v_fma_f32 v9, v%d, v%d, v9" % (cML + 2 * sp, cML + 2 * sp + 1))
for i in range(4):
    I("v_mul_f32 v%d, v%d, v%d" % (10 + i, cML, cO + i))
for sp in range(1, NCH):
    for i in range(4):
        I("v_fma_f32 v%d, v%d, v%d, v%d" % (10 + i, cML + 2 * sp, cO + 4 * sp + i, 10 + i))
I("v_rcp_f32 v9, v9")
for i in range(4):
    I("v_mul_f32 v%d, v%d, v9" % (10 + i, 10 + i))
I("v_cvt_pk_bf16_f32 v14, v10, v11")
I("v_cvt_pk_bf16_f32 v15, v12, v13")
I("s_lshl_b32 s3, s2, 11")
I("buffer_store_dwordx2 v[14:15], v7, %s, s3 offen" % s(cOUT, 4))
e.label("L_comb_done")
I("s_endpgm")

e.raw('.section .rodata,"a"')
for name, nv, ns in ((MAIN, 168, 64), (COMB, 64, 64)):
    e.raw(".p2align 6")
    e.raw(".amdhsa_kernel %s" % name)
    e.raw("  .amdhsa_next_free_vgpr %d" % nv)
    e.raw("  .amdhsa_next_free_sgpr %d" % ns)
    e.raw("  .amdhsa_accum_offset %d" % nv)
    e.raw("  .amdhsa_group_segment_fixed_size 0")
    e.raw("  .amdhsa_kernarg_size 64")
    e.raw("  .amdhsa_user_sgpr_count 2")
    e.raw("  .amdhsa_user_sgpr_kernarg_segment_ptr 1")
    e.raw("  .amdhsa_system_sgpr_workgroup_id_x 1")
    e.raw(".end_amdhsa_kernel")

out = sys.argv[1] if len(sys.argv) > 1 else "standalone__paged_block_table_kv_pagedattention__sampling.s"
open(out, "w").write(e.text())
print("wrote", out, "nops inserted:", e.nops)
```

```python
import math
import struct
import sys

sys.path.insert(0, "gen")
from emit import Emitter

import os
NOCOMPUTE = int(os.environ.get("NOCOMPUTE", "0"))
NODMA = int(os.environ.get("NODMA", "0"))
LINEAR = int(os.environ.get("LINEAR", "0"))
NT = os.environ.get("NT", "")
T = 512
NS = 4
NCH = 4096 // T
KV_BYTES = 4100 * 16384
WS_BYTES = 268697600
MLBASE = 64 * NCH * 32768
NEG = 0xF149F2CA
NINF = 0xFF800000
CSCALE = (128 ** -0.5) * math.log2(math.e)


def f2u(x):
    return struct.unpack("<I", struct.pack("<f", x))[0]


MAIN = "standalone__paged_block_table_kv_pagedattention__sampling_kernel"
COMB = "pa_combine_kernel"

e = Emitter()
I = e

hdr = open("standalone__paged_block_table_kv_pagedattention__sampling.s.ref").read()
hdr_lines = []
for ln in hdr.splitlines():
    if ln.startswith("; Override") or ln.startswith("; grid=") or "@launch" in ln:
        continue
    if not ln.startswith(";"):
        break
    hdr_lines.append(ln)
e.raw("\n".join(hdr_lines))
e.raw("; @launch kernel=%s grid=(%d,1,1) block=(256,1,1) lds=%d" % (MAIN, 64 * NCH, NS * 16384))
e.raw("; @launch kernel=%s grid=(512,1,1) block=(256,1,1) lds=0" % COMB)
e.raw('.amdgcn_target "amdgcn-amd-amdhsa--gfx950"')
e.raw(".text")

e.raw(".globl %s" % MAIN)
e.raw(".p2align 8")
e.raw(".type %s,@function" % MAIN)
e.label(MAIN)

sK, sV, sQ, sWS, sBT = 20, 24, 28, 32, 36
s_chunk, s_b, s_hkv, s_w, s_cl, s_start, s_nt, s_t = 40, 41, 42, 43, 44, 45, 46, 47
s_btidx, s_soff, s_headoff, s_oob, s_ldsw, s_rem, s_c, s_tmp, s_tn, s_end = 48, 49, 50, 51, 52, 53, 54, 55, 56, 57
vQ, vO, vS, vKf, vVf, vP = 8, 24, 56, 64, 96, 128
vKa, vVa = 132, 136
vOK0, vOK1, vOV0, vOV1 = 144, 145, 146, 147
vBT = 148
vM, vL = 150, 151
vAl = 152
vT = 154
vG4 = 166
vNEG = 167


def v(n, cnt=1):
    return "v%d" % n if cnt == 1 else "v[%d:%d]" % (n, n + cnt - 1)


def s(n, cnt=1):
    return "s%d" % n if cnt == 1 else "s[%d:%d]" % (n, n + cnt - 1)


I("s_load_dwordx16 s[4:19], s[0:1], 0")
I("s_lshr_b32 s%d, s2, 6" % s_chunk)
I("s_and_b32 s%d, s2, 15" % s_b)
I("s_bfe_u32 s%d, s2, 0x20004" % s_hkv)
I("v_lshrrev_b32 v2, 6, v0")
I("v_and_b32 v1, 63, v0")
I("v_readfirstlane_b32 s%d, v2" % s_w)
I("s_lshl_b32 s%d, s%d, %d" % (s_start, s_chunk, int(math.log2(T))))
I("s_lshl_b32 s3, s%d, 2" % s_b)
I("s_waitcnt lgkmcnt(0)")
I("s_load_dword s%d, s[12:13], s3" % s_cl)
for base, srd, nbytes in ((6, sK, KV_BYTES), (8, sV, KV_BYTES), (4, sQ, 16 * 32 * 8 * 128 * 2),
                          (18, sWS, WS_BYTES), (10, sBT, 16 * 256 * 4)):
    I("s_mov_b32 s%d, s%d" % (srd, base))
    I("s_mov_b32 s%d, s%d" % (srd + 1, base + 1))
    I("s_mov_b32 s%d, 0x%x" % (srd + 2, nbytes))
    I("s_mov_b32 s%d, 0x20000" % (srd + 3))
I("s_lshl_b32 s3, s%d, 8" % s_b)
I("s_lshl_b32 s%d, s%d, %d" % (s_tmp, s_chunk, int(math.log2(T // 16))))
I("s_add_u32 s3, s3, s%d" % s_tmp)
I("s_lshl_b32 s3, s3, 2")
I("v_lshlrev_b32 v2, 2, v1")
I("buffer_load_dword v%d, v2, %s, s3 offen" % (vBT, s(sBT, 4)))
I("v_and_b32 v3, 15, v1")
I("v_lshrrev_b32 v4, 4, v1")
I("v_lshlrev_b32 v2, 8, v3")
I("v_lshl_add_u32 v2, v4, 4, v2")
I("s_lshl_b32 s3, s%d, 16" % s_b)
I("s_lshl_b32 s%d, s%d, 14" % (s_tmp, s_hkv))
I("s_add_u32 s3, s3, s%d" % s_tmp)
I("s_lshl_b32 s%d, s%d, 12" % (s_tmp, s_w))
I("s_add_u32 s3, s3, s%d" % s_tmp)
for j in range(4):
    I("buffer_load_dwordx4 %s, v2, %s, s3 offen offset:%d" % (v(vQ + 4 * j, 4), s(sQ, 4), 64 * j))

t0, t1, t2, t3, t4 = vT, vT + 1, vT + 2, vT + 3, vT + 4
I("v_xor_b32 v%d, v4, v3" % t0)
for j in range(4):
    I("v_xor_b32 v%d, %d, v%d" % (t1, 4 * j, t0))
    I("v_lshlrev_b32 v%d, 4, v%d" % (t1, t1))
    I("v_lshl_add_u32 v%d, v3, 8, v%d" % (vKa + j, t1))
I("v_lshrrev_b32 v%d, 2, v3" % t0)
I("v_lshl_add_u32 v%d, v4, 2, v%d" % (t1, t0))
I("v_and_b32 v%d, 1, v4" % t2)
I("v_lshl_add_u32 v%d, v%d, 2, v%d" % (t2, t2, t0))
I("v_lshlrev_b32 v%d, 1, v%d" % (t2, t2))
I("v_bfe_u32 v%d, v3, 1, 1" % t3)
I("v_xor_b32 v%d, v%d, v%d" % (t3, t3, t2))
I("v_lshlrev_b32 v%d, 4, v%d" % (t3, t3))
I("v_lshl_add_u32 v%d, v%d, 8, v%d" % (t3, t1, t3))
I("v_and_b32 v%d, 1, v3" % t4)
I("v_lshl_add_u32 v%d, v%d, 3, v%d" % (t3, t4, t3))
for db in range(8):
    I("v_xor_b32 v%d, %d, v%d" % (vVa + db, db << 5, t3))
I("s_and_b32 s3, s%d, 1" % s_w)
I("s_lshl_b32 s3, s3, 1")
I("v_xor_b32 v%d, v3, v4" % t0)
I("v_lshlrev_b32 v%d, 1, v4" % t1)
I("v_xor_b32 v%d, v3, v%d" % (t1, t1))
for ee in range(2):
    I("s_add_u32 s%d, s3, %d" % (s_tmp, ee))
    I("s_lshl_b32 s%d, s%d, 2" % (s_oob, s_tmp))
    I("v_xor_b32 v%d, s%d, v%d" % (t2, s_oob, t0))
    I("v_lshlrev_b32 v%d, 4, v%d" % (t2, t2))
    I("v_lshl_add_u32 v%d, v4, 10, v%d" % (t2, t2))
    I("s_lshl_b32 s%d, s%d, 12" % (s_oob, s_tmp))
    I("v_add_u32 v%d, s%d, v%d" % ((vOK0, vOK1)[ee], s_oob, t2))
    I("v_xor_b32 v%d, %d, v%d" % (t3, 8 * ee, t1))
    I("v_lshlrev_b32 v%d, 4, v%d" % (t3, t3))
    I("v_lshl_add_u32 v%d, v4, 10, v%d" % (t3, t3))
    I("v_add_u32 v%d, s%d, v%d" % ((vOV0, vOV1)[ee], s_oob, t3))
I("v_lshlrev_b32 v%d, 2, v4" % vG4)
I("s_lshl_b32 s%d, s%d, 11" % (s_ldsw, s_w))
I("s_lshl_b32 s%d, s%d, 8" % (s_headoff, s_hkv))
I("s_mov_b32 s%d, 0x%x" % (s_oob, KV_BYTES))
I("s_mov_b32 s%d, 0x%x" % (s_c, f2u(CSCALE)))
I("s_lshr_b32 s%d, s%d, 1" % (s_btidx, s_w))
for i in range(32):
    I("v_mov_b32 v%d, 0" % (vO + i))
I("v_mov_b32 v%d, 0x%x" % (vM, NINF))
I("v_mov_b32 v%d, 0" % vL)
I("v_mov_b32 v%d, 0x%x" % (vNEG, NEG))
I("s_waitcnt lgkmcnt(0)")
I("s_min_i32 s%d, s%d, 0x1000" % (s_tmp, s_cl))
I("s_cmp_le_i32 s%d, 0" % s_cl)
I("s_cselect_b32 s%d, 0x1000, s%d" % (s_tmp, s_tmp))
I("s_add_u32 s%d, s%d, %d" % (s_end, s_start, T))
I("s_min_i32 s%d, s%d, s%d" % (s_end, s_end, s_tmp))
I("s_cmp_ge_i32 s%d, s%d" % (s_start, s_end))
I("s_cbranch_scc1 L_main_done")
I("s_sub_u32 s%d, s%d, s%d" % (s_nt, s_end, s_start))
I("s_add_u32 s%d, s%d, 31" % (s_nt, s_nt))
I("s_lshr_b32 s%d, s%d, 5" % (s_nt, s_nt))
I("s_sub_i32 s%d, s%d, s%d" % (s_rem, s_cl, s_start))
I("s_mov_b32 s%d, 0" % s_t)
I("s_mov_b32 s%d, 0" % s_tn)


def dma_issue(st):
    if LINEAR:
        I("s_lshl_b32 s%d, s2, 17" % s_soff)
        I("s_lshl_b32 s3, s%d, 13" % s_tn)
        I("s_add_u32 s%d, s%d, s3" % (s_soff, s_soff))
        I("s_add_u32 s%d, s%d, s%d" % (s_soff, s_soff, s_ldsw))
        I("s_cmp_lt_u32 s%d, s%d" % (s_tn, s_nt))
        I("s_cselect_b32 s%d, s%d, s%d" % (s_soff, s_soff, s_oob))
        I("s_add_u32 s%d, s%d, 1" % (s_tn, s_tn))
        I("v_lshlrev_b32 v2, 4, v1")
        I("v_add_u32 v5, 1024, v2")
        for vo, srd, off in ((2, sK, 0), (5, sK, 1024), (2, sV, 8192), (5, sV, 9216)):
            I("s_add_u32 m0, s%d, 0x%x" % (s_ldsw, st * 16384 + off))
            I("buffer_load_dwordx4 v%d, %s, s%d offen %s lds" % (vo, s(srd, 4), s_soff, NT))
        return
    I("v_readlane_b32 s%d, v%d, s%d" % (s_soff, vBT, s_btidx))
    I("s_add_u32 s%d, s%d, 2" % (s_btidx, s_btidx))
    I("s_lshl_b32 s%d, s%d, 14" % (s_soff, s_soff))
    I("s_add_u32 s%d, s%d, s%d" % (s_soff, s_soff, s_headoff))
    I("s_cmp_lt_u32 s%d, s%d" % (s_tn, s_nt))
    I("s_cselect_b32 s%d, s%d, s%d" % (s_soff, s_soff, s_oob))
    I("s_add_u32 s%d, s%d, 1" % (s_tn, s_tn))
    for vo, srd, off in ((vOK0, sK, 0), (vOK1, sK, 1024), (vOV0, sV, 8192), (vOV1, sV, 9216)):
        I("s_add_u32 m0, s%d, 0x%x" % (s_ldsw, st * 16384 + off))
        if not NODMA:
            I("buffer_load_dwordx4 v%d, %s, s%d offen %s lds" % (vo, s(srd, 4), s_soff, NT))


I("s_waitcnt vmcnt(4)")
for st in range(NS - 1):
    dma_issue(st)


def softmax(masked, tag):
    S = [vS + i for i in range(8)]
    a0, a1, a2, a3 = vT, vT + 1, vT + 2, vT + 3
    if masked:
        for i in range(8):
            kg, r = i // 4, i % 4
            I("v_mul_f32 v%d, s%d, v%d" % (S[i], s_c, S[i]))
            I("s_sub_i32 s3, s%d, %d" % (s_rem, 16 * kg + r))
            I("v_cmp_gt_i32 vcc, s3, v%d" % vG4)
            I("v_cndmask_b32 v%d, v%d, v%d, vcc" % (S[i], vNEG, S[i]))
    I("v_max3_f32 v%d, v%d, v%d, v%d" % (a0, S[0], S[1], S[2]))
    I("v_max3_f32 v%d, v%d, v%d, v%d" % (a1, S[3], S[4], S[5]))
    I("v_max3_f32 v%d, v%d, v%d, v%d" % (a0, a0, S[6], S[7]))
    I("v_max_f32 v%d, v%d, v%d" % (a0, a0, a1))
    I("v_mov_b32 v%d, v%d" % (a1, a0))
    I("v_permlane32_swap_b32 v%d, v%d" % (a1, a0))
    I("v_max_f32 v%d, v%d, v%d" % (a0, a0, a1))
    I("v_mov_b32 v%d, v%d" % (a1, a0))
    I("v_permlane16_swap_b32 v%d, v%d" % (a1, a0))
    I("v_max_f32 v%d, v%d, v%d" % (a0, a0, a1))
    if not masked:
        I("v_mul_f32 v%d, s%d, v%d" % (a0, s_c, a0))
    I("v_max_f32 v%d, v%d, v%d" % (a2, vM, a0))
    I("v_sub_f32 v%d, v%d, v%d" % (a3, vM, a2))
    I("v_exp_f32 v%d, v%d" % (vAl, a3))
    I("v_mov_b32 v%d, v%d" % (vM, a2))
    for i in range(8):
        if masked:
            I("v_sub_f32 v%d, v%d, v%d" % (S[i], S[i], a2))
        else:
            I("v_fma_f32 v%d, v%d, s%d, -v%d" % (S[i], S[i], s_c, a2))
    for i in range(8):
        I("v_exp_f32 v%d, v%d" % (S[i], S[i]))
    for i in range(4):
        I("v_cvt_pk_bf16_f32 v%d, v%d, v%d" % (vP + i, S[2 * i], S[2 * i + 1]))
    I("v_add_f32 v%d, v%d, v%d" % (a0, S[0], S[1]))
    I("v_add_f32 v%d, v%d, v%d" % (a1, S[2], S[3]))
    I("v_add_f32 v%d, v%d, v%d" % (a2, S[4], S[5]))
    I("v_add_f32 v%d, v%d, v%d" % (a3, S[6], S[7]))
    I("v_add_f32 v%d, v%d, v%d" % (a0, a0, a1))
    I("v_add_f32 v%d, v%d, v%d" % (a2, a2, a3))
    I("v_add_f32 v%d, v%d, v%d" % (a0, a0, a2))
    I("v_fma_f32 v%d, v%d, v%d, v%d" % (vL, vL, vAl, a0))
    for i in range(32):
        I("v_mul_f32 v%d, v%d, v%d" % (vO + i, vAl, vO + i))


def body(st):
    base = st * 16384
    I("s_waitcnt vmcnt(%d)" % (4 * (NS - 2)))
    I("s_barrier")
    dma_issue((st + NS - 1) % NS)
    if NOCOMPUTE:
        I("s_add_u32 s%d, s%d, 1" % (s_t, s_t))
        I("s_cmp_ge_u32 s%d, s%d" % (s_t, s_nt))
        I("s_cbranch_scc1 L_epi")
        return
    for kg in range(2):
        for j in range(4):
            I("ds_read_b128 %s, v%d offset:%d" % (v(vKf + 16 * kg + 4 * j, 4), vKa + j, base + kg * 4096))
    for kg in range(2):
        for j in range(4):
            idx = kg * 4 + j
            I("s_waitcnt lgkmcnt(%d)" % (7 - idx))
            I("v_mfma_f32_16x16x32_bf16 %s, %s, %s, %s" % (
                v(vS + 4 * kg, 4), v(vKf + 4 * idx, 4), v(vQ + 4 * j, 4),
                "0" if j == 0 else v(vS + 4 * kg, 4)))
    for db in range(8):
        for hh in range(2):
            I("ds_read_b64_tr_b16 %s, v%d offset:%d" % (
                v(vVf + 4 * db + 2 * hh, 2), vVa + db, base + 8192 + hh * 4096))
    I("s_cmp_lt_i32 s%d, 32" % s_rem)
    I("s_cbranch_scc1 L_msk%d" % st)
    softmax(False, st)
    I("s_branch L_pv%d" % st)
    e.label("L_msk%d" % st)
    softmax(True, st)
    e.label("L_pv%d" % st)
    I("s_waitcnt lgkmcnt(0)")
    for db in range(8):
        I("v_mfma_f32_16x16x32_bf16 %s, %s, %s, %s" % (
            v(vO + 4 * db, 4), v(vVf + 4 * db, 4), v(vP, 4), v(vO + 4 * db, 4)))
    I("s_sub_i32 s%d, s%d, 32" % (s_rem, s_rem))
    I("s_add_u32 s%d, s%d, 1" % (s_t, s_t))
    I("s_cmp_ge_u32 s%d, s%d" % (s_t, s_nt))
    I("s_cbranch_scc1 L_epi")


e.label("L_loop")
for st in range(NS):
    body(st)
I("s_branch L_loop")

e.label("L_epi")
a0 = vT
I("v_mov_b32 v%d, v%d" % (a0, vL))
I("v_permlane32_swap_b32 v%d, v%d" % (a0, vL))
I("v_add_f32 v%d, v%d, v%d" % (vL, vL, a0))
I("v_mov_b32 v%d, v%d" % (a0, vL))
I("v_permlane16_swap_b32 v%d, v%d" % (a0, vL))
I("v_add_f32 v%d, v%d, v%d" % (vL, vL, a0))
I("v_lshl_add_u32 v2, s%d, 4, v3" % s_w)
I("v_lshlrev_b32 v5, 9, v2")
I("v_lshl_add_u32 v5, v4, 4, v5")
I("s_lshl_b32 s3, s2, 15")
I("s_nop 7")
for db in range(8):
    I("buffer_store_dwordx4 %s, v5, %s, s3 offen offset:%d" % (v(vO + 4 * db, 4), s(sWS, 4), 64 * db))
I("v_lshlrev_b32 v6, 3, v2")
I("s_lshl_b32 s3, s2, 9")
I("s_add_u32 s3, s3, 0x%x" % MLBASE)
I("v_cmp_gt_u32 vcc, 16, v1")
I("s_and_saveexec_b64 s[58:59], vcc")
I("buffer_store_dwordx2 %s, v6, %s, s3 offen" % (v(vM, 2), s(sWS, 4)))
e.label("L_main_done")
I("s_endpgm")

e.raw(".p2align 8")
e.raw(".globl %s" % COMB)
e.raw(".type %s,@function" % COMB)
e.label(COMB)
e.hist = []
cWS, cOUT = 20, 24
I("s_cmp_ge_u32 s2, 512")
I("s_cbranch_scc1 L_comb_done")
I("s_load_dwordx16 s[4:19], s[0:1], 0")
I("s_lshr_b32 s3, s2, 5")
I("s_lshl_b32 s3, s3, 2")
I("v_lshrrev_b32 v2, 6, v0")
I("v_and_b32 v1, 63, v0")
I("v_readfirstlane_b32 s43, v2")
I("s_waitcnt lgkmcnt(0)")
I("s_load_dword s44, s[12:13], s3")
for base, srd, nbytes in ((18, cWS, WS_BYTES), (14, cOUT, 16 * 32 * 8 * 128 * 2)):
    I("s_mov_b32 s%d, s%d" % (srd, base))
    I("s_mov_b32 s%d, s%d" % (srd + 1, base + 1))
    I("s_mov_b32 s%d, 0x%x" % (srd + 2, nbytes))
    I("s_mov_b32 s%d, 0x20000" % (srd + 3))
I("v_and_b32 v3, 31, v1")
I("v_lshrrev_b32 v4, 5, v1")
I("v_lshl_add_u32 v4, s43, 1, v4")
I("v_lshlrev_b32 v5, 9, v4")
I("v_lshl_add_u32 v5, v3, 4, v5")
I("v_lshlrev_b32 v6, 3, v4")
I("v_lshlrev_b32 v7, 8, v4")
I("v_lshl_add_u32 v7, v3, 3, v7")
cO, cML = 16, 48
for sp in range(NCH):
    for i in range(4):
        I("v_mov_b32 v%d, 0" % (cO + 4 * sp + i))
    I("v_mov_b32 v%d, 0x%x" % (cML + 2 * sp, NINF))
    I("v_mov_b32 v%d, 0" % (cML + 2 * sp + 1))
I("s_lshr_b32 s45, s2, 3")
I("s_and_b32 s3, s45, 3")
I("s_lshl_b32 s3, s3, 4")
I("s_lshr_b32 s45, s45, 2")
I("s_add_u32 s45, s45, s3")
I("s_and_b32 s46, s2, 7")
I("s_lshl_b32 s47, s45, 15")
I("s_lshl_b32 s3, s46, 12")
I("s_add_u32 s47, s47, s3")
I("s_lshl_b32 s48, s45, 9")
I("s_lshl_b32 s3, s46, 6")
I("s_add_u32 s48, s48, s3")
I("s_add_u32 s48, s48, 0x%x" % MLBASE)
I("s_waitcnt lgkmcnt(0)")
I("s_min_i32 s3, s44, 0x1000")
I("s_cmp_le_i32 s44, 0")
I("s_cselect_b32 s3, 0x1000, s3")
I("s_add_u32 s3, s3, %d" % (T - 1))
I("s_lshr_b32 s49, s3, %d" % int(math.log2(T)))
for sp in range(NCH):
    if sp > 0:
        I("s_cmp_le_u32 s49, %d" % sp)
        I("s_cbranch_scc1 L_comb_loaded")
    I("buffer_load_dwordx4 %s, v5, %s, s47 offen" % (v(cO + 4 * sp, 4), s(cWS, 4)))
    I("buffer_load_dwordx2 %s, v6, %s, s48 offen" % (v(cML + 2 * sp, 2), s(cWS, 4)))
    I("s_add_u32 s47, s47, 0x%x" % (64 * 32768))
    I("s_add_u32 s48, s48, 0x%x" % (64 * 512))
e.label("L_comb_loaded")
I("s_waitcnt vmcnt(0)")
I("v_max_f32 v8, v%d, v%d" % (cML, cML + 2))
for sp in range(2, NCH):
    I("v_max_f32 v8, v8, v%d" % (cML + 2 * sp))
for sp in range(NCH):
    I("v_sub_f32 v%d, v%d, v8" % (cML + 2 * sp, cML + 2 * sp))
for sp in range(NCH):
    I("v_exp_f32 v%d, v%d" % (cML + 2 * sp, cML + 2 * sp))
I("v_mul_f32 v9, v%d, v%d" % (cML, cML + 1))
for sp in range(1, NCH):
    I("v_fma_f32 v9, v%d, v%d, v9" % (cML + 2 * sp, cML + 2 * sp + 1))
for i in range(4):
    I("v_mul_f32 v%d, v%d, v%d" % (10 + i, cML, cO + i))
for sp in range(1, NCH):
    for i in range(4):
        I("v_fma_f32 v%d, v%d, v%d, v%d" % (10 + i, cML + 2 * sp, cO + 4 * sp + i, 10 + i))
I("v_rcp_f32 v9, v9")
for i in range(4):
    I("v_mul_f32 v%d, v%d, v9" % (10 + i, 10 + i))
I("v_cvt_pk_bf16_f32 v14, v10, v11")
I("v_cvt_pk_bf16_f32 v15, v12, v13")
I("s_lshl_b32 s3, s2, 11")
I("buffer_store_dwordx2 v[14:15], v7, %s, s3 offen" % s(cOUT, 4))
e.label("L_comb_done")
I("s_endpgm")

e.raw('.section .rodata,"a"')
for name, nv, ns in ((MAIN, 168, 64), (COMB, 64, 64)):
    e.raw(".p2align 6")
    e.raw(".amdhsa_kernel %s" % name)
    e.raw("  .amdhsa_next_free_vgpr %d" % nv)
    e.raw("  .amdhsa_next_free_sgpr %d" % ns)
    e.raw("  .amdhsa_accum_offset %d" % nv)
    e.raw("  .amdhsa_group_segment_fixed_size 0")
    e.raw("  .amdhsa_kernarg_size 64")
    e.raw("  .amdhsa_user_sgpr_count 2")
    e.raw("  .amdhsa_user_sgpr_kernarg_segment_ptr 1")
    e.raw("  .amdhsa_system_sgpr_workgroup_id_x 1")
    e.raw(".end_amdhsa_kernel")

out = sys.argv[1] if len(sys.argv) > 1 else "standalone__paged_block_table_kv_pagedattention__sampling.s"
open(out, "w").write(e.text())
print("wrote", out, "nops inserted:", e.nops)
```

```python
import math
import struct
import sys

sys.path.insert(0, "gen")
from emit import Emitter

import os
NOCOMPUTE = int(os.environ.get("NOCOMPUTE", "0"))
NODMA = int(os.environ.get("NODMA", "0"))
LINEAR = int(os.environ.get("LINEAR", "0"))
NT = os.environ.get("NT", "")
STAMPS = int(os.environ.get("STAMPS", "0"))
STBASE = 64 << 20
_stn = [0]
def stamp():
    if not STAMPS:
        return
    k = _stn[0]; _stn[0] += 1
    I("s_memrealtime s[60:61]")
    I("s_waitcnt lgkmcnt(0)")
    I("v_mov_b32 v%d, s60" % (170 + k))

T = 512
NS = 4
NCH = 4096 // T
KV_BYTES = 4100 * 16384
WS_BYTES = 268697600
MLBASE = 64 * NCH * 32768
NEG = 0xF149F2CA
NINF = 0xFF800000
CSCALE = (128 ** -0.5) * math.log2(math.e)


def f2u(x):
    return struct.unpack("<I", struct.pack("<f", x))[0]


MAIN = "standalone__paged_block_table_kv_pagedattention__sampling_kernel"
COMB = "pa_combine_kernel"

e = Emitter()
I = e

hdr = open("standalone__paged_block_table_kv_pagedattention__sampling.s.ref").read()
hdr_lines = []
for ln in hdr.splitlines():
    if ln.startswith("; Override") or ln.startswith("; grid=") or "@launch" in ln:
        continue
    if not ln.startswith(";"):
        break
    hdr_lines.append(ln)
e.raw("\n".join(hdr_lines))
e.raw("; @launch kernel=%s grid=(%d,1,1) block=(256,1,1) lds=%d" % (MAIN, 64 * NCH, NS * 16384))
e.raw("; @launch kernel=%s grid=(512,1,1) block=(256,1,1) lds=0" % COMB)
e.raw('.amdgcn_target "amdgcn-amd-amdhsa--gfx950"')
e.raw(".text")

e.raw(".globl %s" % MAIN)
e.raw(".p2align 8")
e.raw(".type %s,@function" % MAIN)
e.label(MAIN)

sK, sV, sQ, sWS, sBT = 20, 24, 28, 32, 36
s_chunk, s_b, s_hkv, s_w, s_cl, s_start, s_nt, s_t = 40, 41, 42, 43, 44, 45, 46, 47
s_btidx, s_soff, s_headoff, s_oob, s_ldsw, s_rem, s_c, s_tmp, s_tn, s_end = 48, 49, 50, 51, 52, 53, 54, 55, 56, 57
vQ, vO, vS, vKf, vVf, vP = 8, 24, 56, 64, 96, 128
vKa, vVa = 132, 136
vOK0, vOK1, vOV0, vOV1 = 144, 145, 146, 147
vBT = 148
vM, vL = 150, 151
vAl = 152
vT = 154
vG4 = 166
vNEG = 167


def v(n, cnt=1):
    return "v%d" % n if cnt == 1 else "v[%d:%d]" % (n, n + cnt - 1)


def s(n, cnt=1):
    return "s%d" % n if cnt == 1 else "s[%d:%d]" % (n, n + cnt - 1)


stamp()
I("s_load_dwordx16 s[4:19], s[0:1], 0")
I("s_lshr_b32 s%d, s2, 6" % s_chunk)
I("s_and_b32 s%d, s2, 15" % s_b)
I("s_bfe_u32 s%d, s2, 0x20004" % s_hkv)
I("v_lshrrev_b32 v2, 6, v0")
I("v_and_b32 v1, 63, v0")
I("v_readfirstlane_b32 s%d, v2" % s_w)
I("s_lshl_b32 s%d, s%d, %d" % (s_start, s_chunk, int(math.log2(T))))
I("s_lshl_b32 s3, s%d, 2" % s_b)
I("s_waitcnt lgkmcnt(0)")
stamp()
I("s_load_dword s%d, s[12:13], s3" % s_cl)
for base, srd, nbytes in ((6, sK, KV_BYTES), (8, sV, KV_BYTES), (4, sQ, 16 * 32 * 8 * 128 * 2),
                          (18, sWS, WS_BYTES), (10, sBT, 16 * 256 * 4)):
    I("s_mov_b32 s%d, s%d" % (srd, base))
    I("s_mov_b32 s%d, s%d" % (srd + 1, base + 1))
    I("s_mov_b32 s%d, 0x%x" % (srd + 2, nbytes))
    I("s_mov_b32 s%d, 0x20000" % (srd + 3))
I("s_lshl_b32 s3, s%d, 8" % s_b)
I("s_lshl_b32 s%d, s%d, %d" % (s_tmp, s_chunk, int(math.log2(T // 16))))
I("s_add_u32 s3, s3, s%d" % s_tmp)
I("s_lshl_b32 s3, s3, 2")
I("v_lshlrev_b32 v2, 2, v1")
I("buffer_load_dword v%d, v2, %s, s3 offen" % (vBT, s(sBT, 4)))
I("v_and_b32 v3, 15, v1")
I("v_lshrrev_b32 v4, 4, v1")
I("v_lshlrev_b32 v2, 8, v3")
I("v_lshl_add_u32 v2, v4, 4, v2")
I("s_lshl_b32 s3, s%d, 16" % s_b)
I("s_lshl_b32 s%d, s%d, 14" % (s_tmp, s_hkv))
I("s_add_u32 s3, s3, s%d" % s_tmp)
I("s_lshl_b32 s%d, s%d, 12" % (s_tmp, s_w))
I("s_add_u32 s3, s3, s%d" % s_tmp)
for j in range(4):
    I("buffer_load_dwordx4 %s, v2, %s, s3 offen offset:%d" % (v(vQ + 4 * j, 4), s(sQ, 4), 64 * j))

t0, t1, t2, t3, t4 = vT, vT + 1, vT + 2, vT + 3, vT + 4
I("v_xor_b32 v%d, v4, v3" % t0)
for j in range(4):
    I("v_xor_b32 v%d, %d, v%d" % (t1, 4 * j, t0))
    I("v_lshlrev_b32 v%d, 4, v%d" % (t1, t1))
    I("v_lshl_add_u32 v%d, v3, 8, v%d" % (vKa + j, t1))
I("v_lshrrev_b32 v%d, 2, v3" % t0)
I("v_lshl_add_u32 v%d, v4, 2, v%d" % (t1, t0))
I("v_and_b32 v%d, 1, v4" % t2)
I("v_lshl_add_u32 v%d, v%d, 2, v%d" % (t2, t2, t0))
I("v_lshlrev_b32 v%d, 1, v%d" % (t2, t2))
I("v_bfe_u32 v%d, v3, 1, 1" % t3)
I("v_xor_b32 v%d, v%d, v%d" % (t3, t3, t2))
I("v_lshlrev_b32 v%d, 4, v%d" % (t3, t3))
I("v_lshl_add_u32 v%d, v%d, 8, v%d" % (t3, t1, t3))
I("v_and_b32 v%d, 1, v3" % t4)
I("v_lshl_add_u32 v%d, v%d, 3, v%d" % (t3, t4, t3))
for db in range(8):
    I("v_xor_b32 v%d, %d, v%d" % (vVa + db, db << 5, t3))
I("s_and_b32 s3, s%d, 1" % s_w)
I("s_lshl_b32 s3, s3, 1")
I("v_xor_b32 v%d, v3, v4" % t0)
I("v_lshlrev_b32 v%d, 1, v4" % t1)
I("v_xor_b32 v%d, v3, v%d" % (t1, t1))
for ee in range(2):
    I("s_add_u32 s%d, s3, %d" % (s_tmp, ee))
    I("s_lshl_b32 s%d, s%d, 2" % (s_oob, s_tmp))
    I("v_xor_b32 v%d, s%d, v%d" % (t2, s_oob, t0))
    I("v_lshlrev_b32 v%d, 4, v%d" % (t2, t2))
    I("v_lshl_add_u32 v%d, v4, 10, v%d" % (t2, t2))
    I("s_lshl_b32 s%d, s%d, 12" % (s_oob, s_tmp))
    I("v_add_u32 v%d, s%d, v%d" % ((vOK0, vOK1)[ee], s_oob, t2))
    I("v_xor_b32 v%d, %d, v%d" % (t3, 8 * ee, t1))
    I("v_lshlrev_b32 v%d, 4, v%d" % (t3, t3))
    I("v_lshl_add_u32 v%d, v4, 10, v%d" % (t3, t3))
    I("v_add_u32 v%d, s%d, v%d" % ((vOV0, vOV1)[ee], s_oob, t3))
I("v_lshlrev_b32 v%d, 2, v4" % vG4)
I("s_lshl_b32 s%d, s%d, 11" % (s_ldsw, s_w))
I("s_lshl_b32 s%d, s%d, 8" % (s_headoff, s_hkv))
I("s_mov_b32 s%d, 0x%x" % (s_oob, KV_BYTES))
I("s_mov_b32 s%d, 0x%x" % (s_c, f2u(CSCALE)))
I("s_lshr_b32 s%d, s%d, 1" % (s_btidx, s_w))
for i in range(32):
    I("v_mov_b32 v%d, 0" % (vO + i))
I("v_mov_b32 v%d, 0x%x" % (vM, NINF))
I("v_mov_b32 v%d, 0" % vL)
I("v_mov_b32 v%d, 0x%x" % (vNEG, NEG))
I("s_waitcnt lgkmcnt(0)")
I("s_min_i32 s%d, s%d, 0x1000" % (s_tmp, s_cl))
I("s_cmp_le_i32 s%d, 0" % s_cl)
I("s_cselect_b32 s%d, 0x1000, s%d" % (s_tmp, s_tmp))
I("s_add_u32 s%d, s%d, %d" % (s_end, s_start, T))
I("s_min_i32 s%d, s%d, s%d" % (s_end, s_end, s_tmp))
I("s_cmp_ge_i32 s%d, s%d" % (s_start, s_end))
I("s_cbranch_scc1 L_main_done")
I("s_sub_u32 s%d, s%d, s%d" % (s_nt, s_end, s_start))
I("s_add_u32 s%d, s%d, 31" % (s_nt, s_nt))
I("s_lshr_b32 s%d, s%d, 5" % (s_nt, s_nt))
I("s_sub_i32 s%d, s%d, s%d" % (s_rem, s_cl, s_start))
I("s_mov_b32 s%d, 0" % s_t)
I("s_mov_b32 s%d, 0" % s_tn)


def dma_issue(st):
    if LINEAR:
        I("s_lshl_b32 s%d, s2, 17" % s_soff)
        I("s_lshl_b32 s3, s%d, 13" % s_tn)
        I("s_add_u32 s%d, s%d, s3" % (s_soff, s_soff))
        I("s_add_u32 s%d, s%d, s%d" % (s_soff, s_soff, s_ldsw))
        I("s_cmp_lt_u32 s%d, s%d" % (s_tn, s_nt))
        I("s_cselect_b32 s%d, s%d, s%d" % (s_soff, s_soff, s_oob))
        I("s_add_u32 s%d, s%d, 1" % (s_tn, s_tn))
        I("v_lshlrev_b32 v2, 4, v1")
        I("v_add_u32 v5, 1024, v2")
        for vo, srd, off in ((2, sK, 0), (5, sK, 1024), (2, sV, 8192), (5, sV, 9216)):
            I("s_add_u32 m0, s%d, 0x%x" % (s_ldsw, st * 16384 + off))
            I("buffer_load_dwordx4 v%d, %s, s%d offen %s lds" % (vo, s(srd, 4), s_soff, NT))
        return
    I("v_readlane_b32 s%d, v%d, s%d" % (s_soff, vBT, s_btidx))
    I("s_add_u32 s%d, s%d, 2" % (s_btidx, s_btidx))
    I("s_lshl_b32 s%d, s%d, 14" % (s_soff, s_soff))
    I("s_add_u32 s%d, s%d, s%d" % (s_soff, s_soff, s_headoff))
    I("s_cmp_lt_u32 s%d, s%d" % (s_tn, s_nt))
    I("s_cselect_b32 s%d, s%d, s%d" % (s_soff, s_soff, s_oob))
    I("s_add_u32 s%d, s%d, 1" % (s_tn, s_tn))
    for vo, srd, off in ((vOK0, sK, 0), (vOK1, sK, 1024), (vOV0, sV, 8192), (vOV1, sV, 9216)):
        I("s_add_u32 m0, s%d, 0x%x" % (s_ldsw, st * 16384 + off))
        if not NODMA:
            I("buffer_load_dwordx4 v%d, %s, s%d offen %s lds" % (vo, s(srd, 4), s_soff, NT))


I("s_waitcnt vmcnt(4)")
stamp()
for st in range(NS - 1):
    dma_issue(st)


def softmax(masked, tag):
    S = [vS + i for i in range(8)]
    a0, a1, a2, a3 = vT, vT + 1, vT + 2, vT + 3
    if masked:
        for i in range(8):
            kg, r = i // 4, i % 4
            I("v_mul_f32 v%d, s%d, v%d" % (S[i], s_c, S[i]))
            I("s_sub_i32 s3, s%d, %d" % (s_rem, 16 * kg + r))
            I("v_cmp_gt_i32 vcc, s3, v%d" % vG4)
            I("v_cndmask_b32 v%d, v%d, v%d, vcc" % (S[i], vNEG, S[i]))
    I("v_max3_f32 v%d, v%d, v%d, v%d" % (a0, S[0], S[1], S[2]))
    I("v_max3_f32 v%d, v%d, v%d, v%d" % (a1, S[3], S[4], S[5]))
    I("v_max3_f32 v%d, v%d, v%d, v%d" % (a0, a0, S[6], S[7]))
    I("v_max_f32 v%d, v%d, v%d" % (a0, a0, a1))
    I("v_mov_b32 v%d, v%d" % (a1, a0))
    I("v_permlane32_swap_b32 v%d, v%d" % (a1, a0))
    I("v_max_f32 v%d, v%d, v%d" % (a0, a0, a1))
    I("v_mov_b32 v%d, v%d" % (a1, a0))
    I("v_permlane16_swap_b32 v%d, v%d" % (a1, a0))
    I("v_max_f32 v%d, v%d, v%d" % (a0, a0, a1))
    if not masked:
        I("v_mul_f32 v%d, s%d, v%d" % (a0, s_c, a0))
    I("v_max_f32 v%d, v%d, v%d" % (a2, vM, a0))
    I("v_sub_f32 v%d, v%d, v%d" % (a3, vM, a2))
    I("v_exp_f32 v%d, v%d" % (vAl, a3))
    I("v_mov_b32 v%d, v%d" % (vM, a2))
    for i in range(8):
        if masked:
            I("v_sub_f32 v%d, v%d, v%d" % (S[i], S[i], a2))
        else:
            I("v_fma_f32 v%d, v%d, s%d, -v%d" % (S[i], S[i], s_c, a2))
    for i in range(8):
        I("v_exp_f32 v%d, v%d" % (S[i], S[i]))
    for i in range(4):
        I("v_cvt_pk_bf16_f32 v%d, v%d, v%d" % (vP + i, S[2 * i], S[2 * i + 1]))
    I("v_add_f32 v%d, v%d, v%d" % (a0, S[0], S[1]))
    I("v_add_f32 v%d, v%d, v%d" % (a1, S[2], S[3]))
    I("v_add_f32 v%d, v%d, v%d" % (a2, S[4], S[5]))
    I("v_add_f32 v%d, v%d, v%d" % (a3, S[6], S[7]))
    I("v_add_f32 v%d, v%d, v%d" % (a0, a0, a1))
    I("v_add_f32 v%d, v%d, v%d" % (a2, a2, a3))
    I("v_add_f32 v%d, v%d, v%d" % (a0, a0, a2))
    I("v_fma_f32 v%d, v%d, v%d, v%d" % (vL, vL, vAl, a0))
    for i in range(32):
        I("v_mul_f32 v%d, v%d, v%d" % (vO + i, vAl, vO + i))


def body(st):
    base = st * 16384
    I("s_waitcnt vmcnt(%d)" % (4 * (NS - 2)))
    I("s_barrier")
    dma_issue((st + NS - 1) % NS)
    if NOCOMPUTE:
        I("s_add_u32 s%d, s%d, 1" % (s_t, s_t))
        I("s_cmp_ge_u32 s%d, s%d" % (s_t, s_nt))
        I("s_cbranch_scc1 L_epi")
        return
    for kg in range(2):
        for j in range(4):
            I("ds_read_b128 %s, v%d offset:%d" % (v(vKf + 16 * kg + 4 * j, 4), vKa + j, base + kg * 4096))
    for kg in range(2):
        for j in range(4):
            idx = kg * 4 + j
            I("s_waitcnt lgkmcnt(%d)" % (7 - idx))
            I("v_mfma_f32_16x16x32_bf16 %s, %s, %s, %s" % (
                v(vS + 4 * kg, 4), v(vKf + 4 * idx, 4), v(vQ + 4 * j, 4),
                "0" if j == 0 else v(vS + 4 * kg, 4)))
    for db in range(8):
        for hh in range(2):
            I("ds_read_b64_tr_b16 %s, v%d offset:%d" % (
                v(vVf + 4 * db + 2 * hh, 2), vVa + db, base + 8192 + hh * 4096))
    I("s_cmp_lt_i32 s%d, 32" % s_rem)
    I("s_cbranch_scc1 L_msk%d" % st)
    softmax(False, st)
    I("s_branch L_pv%d" % st)
    e.label("L_msk%d" % st)
    softmax(True, st)
    e.label("L_pv%d" % st)
    I("s_waitcnt lgkmcnt(0)")
    for db in range(8):
        I("v_mfma_f32_16x16x32_bf16 %s, %s, %s, %s" % (
            v(vO + 4 * db, 4), v(vVf + 4 * db, 4), v(vP, 4), v(vO + 4 * db, 4)))
    I("s_sub_i32 s%d, s%d, 32" % (s_rem, s_rem))
    I("s_add_u32 s%d, s%d, 1" % (s_t, s_t))
    I("s_cmp_ge_u32 s%d, s%d" % (s_t, s_nt))
    I("s_cbranch_scc1 L_epi")


I("s_waitcnt vmcnt(%d)" % (4 * (NS - 2)))
stamp()
e.label("L_loop")
for st in range(NS):
    body(st)
I("s_branch L_loop")

e.label("L_epi")
stamp()
a0 = vT
I("v_mov_b32 v%d, v%d" % (a0, vL))
I("v_permlane32_swap_b32 v%d, v%d" % (a0, vL))
I("v_add_f32 v%d, v%d, v%d" % (vL, vL, a0))
I("v_mov_b32 v%d, v%d" % (a0, vL))
I("v_permlane16_swap_b32 v%d, v%d" % (a0, vL))
I("v_add_f32 v%d, v%d, v%d" % (vL, vL, a0))
I("v_lshl_add_u32 v2, s%d, 4, v3" % s_w)
I("v_lshlrev_b32 v5, 9, v2")
I("v_lshl_add_u32 v5, v4, 4, v5")
I("s_lshl_b32 s3, s2, 15")
I("s_nop 7")
for db in range(8):
    I("buffer_store_dwordx4 %s, v5, %s, s3 offen offset:%d" % (v(vO + 4 * db, 4), s(sWS, 4), 64 * db))
I("v_lshlrev_b32 v6, 3, v2")
I("s_lshl_b32 s3, s2, 9")
I("s_add_u32 s3, s3, 0x%x" % MLBASE)
I("v_cmp_gt_u32 vcc, 16, v1")
I("s_and_saveexec_b64 s[58:59], vcc")
I("buffer_store_dwordx2 %s, v6, %s, s3 offen" % (v(vM, 2), s(sWS, 4)))
if STAMPS:
    I("s_mov_b64 exec, -1")
    I("s_waitcnt vmcnt(0)")
    stamp()
    I("s_lshl_b32 s3, s2, 6")
    I("s_add_u32 s3, s3, 0x%x" % STBASE)
    I("v_mov_b32 v2, 0")
    I("v_cmp_eq_u32 vcc, 0, v0")
    I("s_and_saveexec_b64 s[58:59], vcc")
    I("buffer_store_dwordx4 v[170:173], v2, %s, s3 offen" % s(sWS, 4))
    I("buffer_store_dwordx2 v[174:175], v2, %s, s3 offen offset:16" % s(sWS, 4))
    if STAMPS == 2:
        I("s_mov_b32 s60, s16")
        I("s_mov_b32 s61, s17")
        I("s_mov_b32 s62, 256")
        I("s_mov_b32 s63, 0x20000")
        I("v_not_b32 v170, v170")
        for k in range(6):
            I("buffer_atomic_umax v%d, v2, s[60:63], 0 offen offset:%d" % (170 + k, 4 * k))
e.label("L_main_done")
I("s_endpgm")

e.raw(".p2align 8")
e.raw(".globl %s" % COMB)
e.raw(".type %s,@function" % COMB)
e.label(COMB)
e.hist = []
cWS, cOUT = 20, 24
I("s_cmp_ge_u32 s2, 512")
I("s_cbranch_scc1 L_comb_done")
I("s_load_dwordx16 s[4:19], s[0:1], 0")
I("s_lshr_b32 s3, s2, 5")
I("s_lshl_b32 s3, s3, 2")
I("v_lshrrev_b32 v2, 6, v0")
I("v_and_b32 v1, 63, v0")
I("v_readfirstlane_b32 s43, v2")
I("s_waitcnt lgkmcnt(0)")
I("s_load_dword s44, s[12:13], s3")
for base, srd, nbytes in ((18, cWS, WS_BYTES), (14, cOUT, 16 * 32 * 8 * 128 * 2)):
    I("s_mov_b32 s%d, s%d" % (srd, base))
    I("s_mov_b32 s%d, s%d" % (srd + 1, base + 1))
    I("s_mov_b32 s%d, 0x%x" % (srd + 2, nbytes))
    I("s_mov_b32 s%d, 0x20000" % (srd + 3))
I("v_and_b32 v3, 31, v1")
I("v_lshrrev_b32 v4, 5, v1")
I("v_lshl_add_u32 v4, s43, 1, v4")
I("v_lshlrev_b32 v5, 9, v4")
I("v_lshl_add_u32 v5, v3, 4, v5")
I("v_lshlrev_b32 v6, 3, v4")
I("v_lshlrev_b32 v7, 8, v4")
I("v_lshl_add_u32 v7, v3, 3, v7")
cO, cML = 16, 48
for sp in range(NCH):
    for i in range(4):
        I("v_mov_b32 v%d, 0" % (cO + 4 * sp + i))
    I("v_mov_b32 v%d, 0x%x" % (cML + 2 * sp, NINF))
    I("v_mov_b32 v%d, 0" % (cML + 2 * sp + 1))
I("s_lshr_b32 s45, s2, 3")
I("s_and_b32 s3, s45, 3")
I("s_lshl_b32 s3, s3, 4")
I("s_lshr_b32 s45, s45, 2")
I("s_add_u32 s45, s45, s3")
I("s_and_b32 s46, s2, 7")
I("s_lshl_b32 s47, s45, 15")
I("s_lshl_b32 s3, s46, 12")
I("s_add_u32 s47, s47, s3")
I("s_lshl_b32 s48, s45, 9")
I("s_lshl_b32 s3, s46, 6")
I("s_add_u32 s48, s48, s3")
I("s_add_u32 s48, s48, 0x%x" % MLBASE)
I("s_waitcnt lgkmcnt(0)")
I("s_min_i32 s3, s44, 0x1000")
I("s_cmp_le_i32 s44, 0")
I("s_cselect_b32 s3, 0x1000, s3")
I("s_add_u32 s3, s3, %d" % (T - 1))
I("s_lshr_b32 s49, s3, %d" % int(math.log2(T)))
for sp in range(NCH):
    if sp > 0:
        I("s_cmp_le_u32 s49, %d" % sp)
        I("s_cbranch_scc1 L_comb_loaded")
    I("buffer_load_dwordx4 %s, v5, %s, s47 offen" % (v(cO + 4 * sp, 4), s(cWS, 4)))
    I("buffer_load_dwordx2 %s, v6, %s, s48 offen" % (v(cML + 2 * sp, 2), s(cWS, 4)))
    I("s_add_u32 s47, s47, 0x%x" % (64 * 32768))
    I("s_add_u32 s48, s48, 0x%x" % (64 * 512))
e.label("L_comb_loaded")
I("s_waitcnt vmcnt(0)")
I("v_max_f32 v8, v%d, v%d" % (cML, cML + 2))
for sp in range(2, NCH):
    I("v_max_f32 v8, v8, v%d" % (cML + 2 * sp))
for sp in range(NCH):
    I("v_sub_f32 v%d, v%d, v8" % (cML + 2 * sp, cML + 2 * sp))
for sp in range(NCH):
    I("v_exp_f32 v%d, v%d" % (cML + 2 * sp, cML + 2 * sp))
I("v_mul_f32 v9, v%d, v%d" % (cML, cML + 1))
for sp in range(1, NCH):
    I("v_fma_f32 v9, v%d, v%d, v9" % (cML + 2 * sp, cML + 2 * sp + 1))
for i in range(4):
    I("v_mul_f32 v%d, v%d, v%d" % (10 + i, cML, cO + i))
for sp in range(1, NCH):
    for i in range(4):
        I("v_fma_f32 v%d, v%d, v%d, v%d" % (10 + i, cML + 2 * sp, cO + 4 * sp + i, 10 + i))
I("v_rcp_f32 v9, v9")
for i in range(4):
    I("v_mul_f32 v%d, v%d, v9" % (10 + i, 10 + i))
I("v_cvt_pk_bf16_f32 v14, v10, v11")
I("v_cvt_pk_bf16_f32 v15, v12, v13")
I("s_lshl_b32 s3, s2, 11")
I("buffer_store_dwordx2 v[14:15], v7, %s, s3 offen" % s(cOUT, 4))
e.label("L_comb_done")
I("s_endpgm")

e.raw('.section .rodata,"a"')
for name, nv, ns in ((MAIN, 176, 64), (COMB, 64, 64)):
    e.raw(".p2align 6")
    e.raw(".amdhsa_kernel %s" % name)
    e.raw("  .amdhsa_next_free_vgpr %d" % nv)
    e.raw("  .amdhsa_next_free_sgpr %d" % ns)
    e.raw("  .amdhsa_accum_offset %d" % nv)
    e.raw("  .amdhsa_group_segment_fixed_size 0")
    e.raw("  .amdhsa_kernarg_size 64")
    e.raw("  .amdhsa_user_sgpr_count 2")
    e.raw("  .amdhsa_user_sgpr_kernarg_segment_ptr 1")
    e.raw("  .amdhsa_system_sgpr_workgroup_id_x 1")
    e.raw(".end_amdhsa_kernel")

out = sys.argv[1] if len(sys.argv) > 1 else "standalone__paged_block_table_kv_pagedattention__sampling.s"
open(out, "w").write(e.text())
print("wrote", out, "nops inserted:", e.nops)
```
